```python
import torch

def _softmax(x, axis=-1):
    return torch.softmax(x, dim=axis)
def _gelu(x):
    return torch.nn.functional.gelu(x, approximate="tanh")
def _silu(x):
    return torch.nn.functional.silu(x)
def _sigmoid(x):
    return torch.sigmoid(x)
def _layernorm(x, axis=-1, eps=1e-5):
    m = x.mean(dim=axis, keepdim=True)
    v = x.var(dim=axis, keepdim=True, unbiased=False)
    return (x - m) / torch.sqrt(v + eps)
def _scatter_add(tgt, idx, src, axis=0):
    return tgt.clone().index_add_(axis, idx, src)
def _segment_sum(src, seg, n):
    out = torch.zeros((n,) + src.shape[1:], dtype=src.dtype)
    return out.index_add_(0, seg, src)
def _pad(x, pw):
    flat = tuple(v for pair in reversed(pw) for v in pair)
    return torch.nn.functional.pad(x, flat)

kernel_name = 'sequential_preLN__sliding_block__swiglu_ffn__prompt'

def setup_inputs():

    _w = (lambda a: (lambda t: t.to(torch.bfloat16) if t.is_floating_point() else t)(torch.as_tensor(a)))
    def _A_setup():
        B, S, D = 1, 2048, 576
        return {
            "x": _w((lambda *s: torch.randn(*s, dtype=torch.bfloat16) * 0.05)(B, S, D)),
            "wqkv": _w((lambda *s: torch.randn(*s, dtype=torch.bfloat16) * 0.05)(D, 3 * D)),
            "wo": _w((lambda *s: torch.randn(*s, dtype=torch.bfloat16) * 0.05)(D, D)),
        }
    _A_in = _A_setup()

    def _B_setup():
        B, S, D, F = 1, 2048, 576, 4608
        return {
            "x": _w((lambda *s: torch.randn(*s, dtype=torch.bfloat16) * 0.05)(B, S, D)),
            "w_gate": _w((lambda *s: torch.randn(*s, dtype=torch.bfloat16) * 0.05)(D, F)),
            "w_up": _w((lambda *s: torch.randn(*s, dtype=torch.bfloat16) * 0.05)(D, F)),
            "w_down": _w((lambda *s: torch.randn(*s, dtype=torch.bfloat16) * 0.05)(F, D)),
        }
    _B_in = _B_setup()

    return {
        "A_x": _A_in["x"],
        "A_wqkv": _A_in["wqkv"],
        "A_wo": _A_in["wo"],
        "B_x": _B_in["x"],
        "B_w_gate": _B_in["w_gate"],
        "B_w_up": _B_in["w_up"],
        "B_w_down": _B_in["w_down"],
    }

def reference(A_x, A_wqkv, A_wo, B_x, B_w_gate, B_w_up, B_w_down):
    def _A_ref(x, wqkv, wo):
        B, S, D = x.shape
        H = 32; Dh = D // H; W = 256
        qkv = (lambda x, *d: x.permute(*d))((x @ wqkv).reshape(B, S, 3, H, Dh), 2, 0, 3, 1, 4)
        q, k, v = qkv[0], qkv[1], qkv[2]
        scores = torch.einsum("bhqd,bhkd->bhqk", q, k) * (Dh ** -0.5)
        idx = torch.arange(S)
        mask = (idx[:, None] - idx[None, :] >= 0) & (idx[:, None] - idx[None, :] < W)
        scores = torch.where(mask[None, None], scores, -1e9)
        p = _softmax(scores, axis=-1)
        o = torch.einsum("bhqk,bhkd->bhqd", p, v)
        return (lambda x, *d: x.permute(*d))(o, 0, 2, 1, 3).reshape(B, S, D) @ wo

    def _B_ref(x, w_gate, w_up, w_down):
        g = _silu(x @ w_gate)
        u = x @ w_up
        return (g * u) @ w_down

    x = A_x
    h = x + _A_ref(_layernorm(x, axis=-1), A_wqkv, A_wo)
    h2 = h + _B_ref(_layernorm(h, axis=-1), B_w_gate, B_w_up, B_w_down)
    return h2
```

```python
class Asm:
    def __init__(self):
        self.lines = []
        self.nlab = 0
    def __call__(self, s):
        for ln in s.split("\n"):
            ln = ln.strip()
            if ln:
                self.lines.append(("    " if not ln.endswith(":") else "") + ln)
    def label(self, base):
        self.nlab += 1
        return f"L_{base}_{self.nlab}"
    def raw(self, s):
        self.lines.append(s)
    def text(self):
        return "\n".join(self.lines) + "\n"

def vr(a, n=1, p="v"):
    return f"{p}{a}" if n == 1 else f"{p}[{a}:{a+n-1}]"
def sr(a, n=1):
    return vr(a, n, "s")
def ar(a, n=1):
    return vr(a, n, "a")

def kernel_header(a, name):
    a.raw(".text")
    a.raw(f".globl {name}")
    a.raw(".p2align 8")
    a.raw(f".type {name},@function")
    a.raw(f"{name}:")

def kernel_desc(name, nvgpr, accum, nsgpr=102, extra=""):
    return f""".section .rodata,"a"
.p2align 6
.amdhsa_kernel {name}
  .amdhsa_next_free_vgpr {nvgpr}
  .amdhsa_next_free_sgpr {nsgpr}
  .amdhsa_accum_offset {accum}
  .amdhsa_group_segment_fixed_size 0
  .amdhsa_kernarg_size 80
  .amdhsa_user_sgpr_count 2
  .amdhsa_user_sgpr_kernarg_segment_ptr 1
  .amdhsa_system_sgpr_workgroup_id_x 1
  .amdhsa_float_denorm_mode_32 3
  .amdhsa_ieee_mode 0
{extra}.end_amdhsa_kernel
"""

def interleave(main, fill, start=0, end=None):
    if end is None: end = len(main)
    n = end - start
    out = []
    k = 0
    for i, g in enumerate(main):
        out.extend(g)
        if start <= i < end:
            tgt = (len(fill) * (i - start + 1) + n - 1) // n
            while k < tgt:
                out.append(fill[k]); k += 1
    assert k == len(fill)
    return out
```

```python
from asmlib import *
QK_OFF = 0
V_OFF = 5 << 20
O_OFF = 8 << 20
OL_OFF = 10 << 20
H_OFF = 11 << 20
ST2_OFF = 14 << 20
P_OFF = 16 << 20
STAMP_OFF = 64 << 20
WS_BYTES = 0x10000000
class Opt:
    stamps = False
    sc1 = " sc1"
OPT = Opt()

def srd(a, s, lo, hi, nbytes):
    a(f"s_mov_b32 s{s}, s{lo}\ns_mov_b32 s{s+1}, s{hi}\ns_mov_b32 s{s+2}, {nbytes}\ns_mov_b32 s{s+3}, 0x20000")

def entry(a, name, nwg):
    kernel_header(a, name)
    a(f"s_cmp_ge_u32 s2, {nwg}\ns_cbranch_scc1 L_{name}_end")
    stamp(a, 0, first=True)

def wave_lane(a):
    a("v_lshrrev_b32 v1, 6, v0\nv_and_b32 v0, 63, v0\nv_readfirstlane_b32 s3, v1")

def stamp(a, k, first=False):
    if OPT.stamps:
        a(f"s_memrealtime s[{84+2*k}:{85+2*k}]")
        if not first: a("s_waitcnt lgkmcnt(0)")
def finish(a, name, kidx, ws_srd, nst):
    if OPT.stamps:
        a("s_waitcnt vmcnt(0)")
        stamp(a, nst)
        a(f"s_lshl_b32 s80, s2, 3\ns_add_u32 s80, s80, s3\ns_lshl_b32 s80, s80, 5\ns_add_u32 s80, s80, {STAMP_OFF + kidx*65536}")
        a("s_mov_b64 exec, -1\nv_mov_b32 v0, s80")
        for k in range(nst + 1):
            a(f"v_mov_b32 v1, s{84+2*k}\nbuffer_store_dword v1, v0, s[{ws_srd}:{ws_srd+3}], 0 offen offset:{4*k}")
        a("s_waitcnt vmcnt(0)")
    a(f"L_{name}_end:\ns_endpgm")

def mfma32(d, A, B, c):
    return f"v_mfma_f32_32x32x16_bf16 {d}, {A}, {B}, {c}"
def mfma16(d, A, B, c):
    return f"v_mfma_f32_16x16x32_bf16 {d}, {A}, {B}, {c}"

def spread(groups, fill, lo=0, hi=None):
    if hi is None: hi = len(groups)
    n = hi - lo; k = 0
    for i in range(lo, hi):
        tgt = (len(fill) * (i - lo + 1) + n - 1) // n
        while k < tgt:
            groups[i].append(fill[k]); k += 1
    assert k == len(fill)
import struct
def fx(x):
    return "0x%08x" % struct.unpack("<I", struct.pack("<f", x))[0]

def cost(s):
    c = 0
    for ln in s.split("\n"):
        op = ln.split()[0]
        if op.startswith("v_mfma"): c += 8
        elif op in ("v_exp_f32", "v_rcp_f32", "v_rsq_f32", "v_log_f32"): c += 8
        elif op.startswith("buffer_"): c += 6
        else: c += 4
    return c

def waterfill(groups, fill, lo=0, hi=None):
    if hi is None: hi = len(groups)
    if not fill: return
    base = [sum(cost(x) for x in g) for g in groups]
    fc = [cost(x) for x in fill]
    def place(L):
        k = 0; out = []
        for i in range(lo, hi):
            c = base[i]; n = 0
            while k < len(fill) and c + fc[k] <= L:
                c += fc[k]; k += 1; n += 1
            out.append(n)
        return k == len(fill), out
    L = 8
    while not place(L)[0]: L += 2
    tot = sum(fc); room = [max(0, L - base[i]) for i in range(lo, hi)]; rt = sum(room)
    k = 0; done = 0; acc = 0
    for j, i in enumerate(range(lo, hi)):
        acc += room[j]
        c = base[i]
        while k < len(fill) and c + fc[k] <= L and (done + fc[k] / 2) <= tot * acc / rt + 1e-9:
            groups[i].append(fill[k]); c += fc[k]; done += fc[k]; k += 1
    if k < len(fill):
        for i in range(lo, hi):
            while len(groups[i]) and groups[i][-1] in fill and any(groups[i][-1] is f for f in fill): groups[i].pop()
        ok, cnt = place(L); k = 0
        for j, i in enumerate(range(lo, hi)):
            for _ in range(cnt[j]): groups[i].append(fill[k]); k += 1
    return L

class VM:
    @staticmethod
    def resolve(lines):
        issued = []; out = []
        for ln in lines:
            for s in ln.split("\n"):
                s = s.strip()
                if s.startswith("WAITVM"):
                    tags = s.split()[1:]
                    last = max(i for i, t in enumerate(issued) if t in tags)
                    n = len(issued) - 1 - last
                    out.append(f"s_waitcnt vmcnt({min(n, 63)})")
                elif s.startswith(("buffer_", "global_")):
                    tag = None
                    if "#" in s: s, tag = s.split("#"); s = s.strip(); tag = tag.strip()
                    issued.append(tag); out.append(s)
                else: out.append(s)
        return out
```

```python
import re
_reg = re.compile(r"^-?\|?(?:abs\()?([vas])(\d+)\)?\|?$")
_rng = re.compile(r"^-?([vas])\[(\d+):(\d+)\]$")
TRANS = ("v_exp_f32", "v_log_f32", "v_rcp_f32", "v_rsq_f32", "v_sqrt_f32", "v_sin_f32", "v_cos_f32", "v_rcp_iflag_f32")
def regs(op):
    op = op.strip()
    m = _reg.match(op)
    if m: return {(m.group(1), int(m.group(2)))}
    m = _rng.match(op)
    if m: return {(m.group(1), i) for i in range(int(m.group(2)), int(m.group(3)) + 1)}
    if op in ("vcc",): return {("s", "vcc_lo"), ("s", "vcc_hi")}
    if op in ("vcc_lo", "vcc_hi"): return {("s", op)}
    if op == "exec": return {("s", "exec")}
    if op in ("exec_lo", "exec_hi"): return {("s", "exec")}
    if op == "m0": return {("s", "m0")}
    return set()
class I:
    pass
def parse(line):
    s = line.split(";")[0].strip()
    if not s or s.endswith(":") or s.startswith("."): return None
    p = s.split(None, 1)
    i = I(); i.op = p[0]; rest = p[1] if len(p) > 1 else ""
    ops = [x.strip() for x in rest.split(",")] if rest else []
    mods = ""
    if ops:
        last = ops[-1].split(None, 1)
        ops[-1] = last[0]
        mods = last[1] if len(last) > 1 else ""
    i.ops = ops; i.mods = mods
    R = [regs(o) for o in ops]
    op = i.op
    i.defs = set(); i.uses = set(); i.srcC = set(); i.srcAB = set(); i.data = set()
    i.valu = op.startswith("v_") and not op.startswith("v_mfma")
    i.mfma = op.startswith("v_mfma")
    i.vmem = op.startswith(("buffer_", "global_", "flat_"))
    i.ds = op.startswith("ds_")
    i.salu = op.startswith("s_")
    i.trans = op.replace("_e32", "").replace("_e64", "") in TRANS
    i.lds_dma = i.vmem and (" lds" in " " + mods or "load_lds" in op)
    i.states = 1
    U = lambda l: set().union(*l) if l else set()
    if op == "s_nop": i.states = int(ops[0], 0) + 1
    elif i.mfma:
        i.defs = R[0]; i.srcAB = R[1] | R[2]; i.srcC = R[3]; i.uses = i.srcAB | i.srcC
        i.passes = 8 if "32x32x16" in op else (4 if "16x16x32" in op else None)
        assert i.passes, op
    elif op.startswith("v_permlane") or op.startswith("v_swap"):
        i.defs = R[0] | R[1]; i.uses = R[0] | R[1]
    elif op.startswith(("v_add_co", "v_sub_co", "v_addc_co", "v_subb_co")):
        i.defs = R[0] | R[1]; i.uses = U(R[2:])
    elif op.startswith("v_cmpx"):
        i.defs = R[0] | {("s", "exec")}; i.uses = U(R[1:])
    elif i.valu:
        i.defs = R[0]; i.uses = U(R[1:])
        if op.startswith(("v_fmac", "v_dot2c", "v_pk_fmac", "v_writelane")) or "_dpp" in op or "_sdwa" in op: i.uses |= R[0]
    elif i.ds:
        if op.startswith(("ds_read", "ds_bpermute", "ds_permute", "ds_swizzle")): i.defs = R[0]; i.uses = U(R[1:])
        else: i.uses = U(R)
    elif i.vmem:
        if i.lds_dma: i.uses = U(R) | {("s", "m0")}
        elif "load" in op: i.defs = R[0]; i.uses = U(R[1:])
        elif "atomic" in op and "sc0" in mods: i.defs = R[0]; i.uses = U(R)
        else:
            i.uses = U(R)
            if "x3" in op or "x4" in op:
                i.data = R[0] if op.startswith("buffer") else R[1]
    elif i.salu:
        if op.startswith(("s_cmp", "s_waitcnt", "s_barrier", "s_cbranch", "s_branch", "s_endpgm", "s_setprio", "s_sleep", "s_bitcmp")):
            i.uses = U(R)
        elif "saveexec" in op: i.defs = R[0] | {("s", "exec")}; i.uses = U(R[1:])
        else: i.defs = R[0] if R else set(); i.uses = U(R[1:])
    return i
def isv(s): return {r for r in s if r[0] in "va"}
def iss(s): return {r for r in s if r[0] == "s"}
def need(p, c):
    n = 0
    if p.valu:
        dv = isv(p.defs); dsg = iss(p.defs)
        if c.mfma and dv & c.uses: n = max(n, 2)
        if c.op.startswith("v_permlane") and dv & c.uses: n = max(n, 2)
        if "_dpp" in c.op and dv & c.uses: n = max(n, 2)
        if c.op.startswith(("v_readlane", "v_readfirstlane")) and dv & c.uses: n = max(n, 1)
        if p.trans and c.valu and not c.trans and dv & c.uses: n = max(n, 1)
        if ("_sdwa" in p.op or "op_sel" in p.mods) and c.valu and dv & (c.uses | c.defs): n = max(n, 1)
        if dsg:
            if c.vmem and dsg & c.uses: n = max(n, 5)
            if c.valu and dsg & c.uses: n = max(n, 4 if c.op.startswith(("v_readlane", "v_writelane")) else 2)
            if c.salu and dsg & c.uses: n = max(n, 1)
            if ("s", "exec") in dsg and (c.mfma or c.op.startswith(("v_permlane", "v_readlane", "v_readfirstlane"))): n = max(n, 4)
            if ("s", "exec") in dsg and "_dpp" in c.op: n = max(n, 5)
    if p.salu and ("s", "m0") in p.defs and c.lds_dma: n = max(n, 1)
    if p.data and (isv(c.defs) & p.data): n = max(n, 2)
    if p.mfma:
        k = p.passes
        if c.mfma:
            if p.defs & c.srcAB: n = max(n, {4: 8, 8: 12}[k])
            if p.defs & c.srcC and not (p.defs == c.srcC and k == c.passes): n = max(n, {4: 6, 8: 10}[k])
            if p.defs & c.defs and not (p.defs == c.srcC and k == c.passes) : n = max(n, {4: 6, 8: 10}[k])
        elif c.valu or c.vmem or c.ds:
            if p.defs & (c.uses | c.defs): n = max(n, {4: 8, 8: 12}[k])
            if c.valu and p.srcC & c.defs: n = max(n, {4: 3, 8: 7}[k])
    return n
def fix(lines, verbose=False):
    out = []; hist = []
    nins = 0
    for ln in lines:
        c = parse(ln)
        if c is None:
            out.append(ln); continue
        dist = 0; req = 0
        for p in reversed(hist):
            r = need(p, c) - dist
            if r > req: req = r; why = p
            dist += p.states
            if dist >= 20: break
        if req > 0:
            if verbose: print(f"hazard: +{req} before '{ln.strip()}' (after {why.op} {why.ops})")
            nop = parse(f"s_nop {req-1}")
            out.append(f"    s_nop {req-1}"); hist.append(nop); nins += 1
        out.append(ln); hist.append(c)
        if c.op in ("s_endpgm", "s_branch"): hist = []
        hist = hist[-24:]
    return out, nins
def check_loop(lines, label):
    idx = [k for k, l in enumerate(lines) if l.strip() == label + ":"][0]
    end = max(k for k, l in enumerate(lines) if l.split(";")[0].strip().endswith(" " + label))
    body = lines[idx + 1:end + 1]
    tail = [l for l in body[-30:] if not l.strip().startswith("s_branch")]
    o, n = fix(tail + body[:30], verbose=True)
    return n
```

```python
import sys, importlib
from common import *
import hazard
def build(mods, path, stamps=False, verbose=False):
    OPT.stamps = stamps
    a = Asm()
    for m in mods: a.raw(m.launch())
    a.raw('.amdgcn_target "amdgcn-amd-amdhsa--gfx950"')
    for m in mods: m.gen(a)
    lines, n = hazard.fix(a.lines, verbose)
    labels = [l.strip()[:-1] for l in lines if l.strip().endswith(":") and "loop" in l]
    for lb in labels:
        k = hazard.check_loop(lines, lb)
        assert k == 0, lb
    txt = "\n".join(lines) + "\n" + "".join(m.desc() for m in mods)
    open(path, "w").write(txt)
    return n
if __name__ == "__main__":
    names = sys.argv[2].split(",")
    mods = [importlib.import_module(n) for n in names]
    n = build(mods, sys.argv[1], stamps="stamps" in sys.argv, verbose="-v" in sys.argv)
    print("nops inserted:", n)
```
